```python
import torch

def _softmax(x, axis=-1):
    return torch.softmax(x, dim=axis)
def _gelu(x):
    return torch.nn.functional.gelu(x, approximate="tanh")
def _silu(x):
    return torch.nn.functional.silu(x)
def _sigmoid(x):
    return torch.sigmoid(x)
def _layernorm(x, axis=-1, eps=1e-5):
    m = x.mean(dim=axis, keepdim=True)
    v = x.var(dim=axis, keepdim=True, unbiased=False)
    return (x - m) / torch.sqrt(v + eps)
def _scatter_add(tgt, idx, src, axis=0):
    return tgt.clone().index_add_(axis, idx, src)
def _segment_sum(src, seg, n):
    out = torch.zeros((n,) + src.shape[1:], dtype=src.dtype)
    return out.index_add_(0, seg, src)
def _pad(x, pw):
    flat = tuple(v for pair in reversed(pw) for v in pair)
    return torch.nn.functional.pad(x, flat)

kernel_name = 'sequential_preLN__linear_attn_block__geglu_ffn__prompt'

def setup_inputs():

    _w = (lambda a: (lambda t: t.to(torch.bfloat16) if t.is_floating_point() else t)(torch.as_tensor(a)))
    def _A_setup():
        B, S, D = 1, 2048, 1024
        return {
            "x": _w((lambda *s: torch.randn(*s, dtype=torch.bfloat16) * 0.05)(B, S, D)),
            "wqkv": _w((lambda *s: torch.randn(*s, dtype=torch.bfloat16) * 0.05)(D, 3 * D)),
            "wo": _w((lambda *s: torch.randn(*s, dtype=torch.bfloat16) * 0.05)(D, D)),
        }
    _A_in = _A_setup()

    def _B_setup():
        B, S, D, F = 1, 2048, 1024, 3584
        return {
            "x": _w((lambda *s: torch.randn(*s, dtype=torch.bfloat16) * 0.05)(B, S, D)),
            "w_gate": _w((lambda *s: torch.randn(*s, dtype=torch.bfloat16) * 0.05)(D, F)),
            "w_up": _w((lambda *s: torch.randn(*s, dtype=torch.bfloat16) * 0.05)(D, F)),
            "w_down": _w((lambda *s: torch.randn(*s, dtype=torch.bfloat16) * 0.05)(F, D)),
        }
    _B_in = _B_setup()

    return {
        "A_x": _A_in["x"],
        "A_wqkv": _A_in["wqkv"],
        "A_wo": _A_in["wo"],
        "B_x": _B_in["x"],
        "B_w_gate": _B_in["w_gate"],
        "B_w_up": _B_in["w_up"],
        "B_w_down": _B_in["w_down"],
    }

def reference(A_x, A_wqkv, A_wo, B_x, B_w_gate, B_w_up, B_w_down):
    def _A_ref(x, wqkv, wo):
        B, S, D = x.shape
        H = 32; Dh = D // H
        qkv = (lambda x, *d: x.permute(*d))((x @ wqkv).reshape(B, S, 3, H, Dh), 2, 0, 3, 1, 4)
        q, k, v = qkv[0], qkv[1], qkv[2]
        phi = lambda t: torch.where(t > 0, t + 1, torch.exp(t)) + 1e-6
        pq, pk = phi(q), phi(k)
        kv = torch.einsum("bhsd,bhse->bhde", pk, v)
        z = torch.einsum("bhsd->bhd", pk)
        num = torch.einsum("bhqd,bhde->bhqe", pq, kv)
        den = torch.einsum("bhqd,bhd->bhq", pq, z)[..., None] + 1e-6
        o = num / den
        return (lambda x, *d: x.permute(*d))(o, 0, 2, 1, 3).reshape(B, S, D) @ wo

    def _B_ref(x, w_gate, w_up, w_down):
        return (_gelu(x @ w_gate) * (x @ w_up)) @ w_down

    x = A_x
    h = x + _A_ref(_layernorm(x, axis=-1), A_wqkv, A_wo)
    h2 = h + _B_ref(_layernorm(h, axis=-1), B_w_gate, B_w_up, B_w_down)
    return h2
```

```python
from kb import *

MT = 128

class Reg:
    def __init__(self, kind, idx): self.kind, self.idx = kind, idx
    def r(self, n=4, off=0):
        i = self.idx + off
        return f"{self.kind}[{i}:{i+n-1}]" if n > 1 else f"{self.kind}{i}"

def tile_map(k, ntm, ntn, xb):
    bm, bn = xb
    gx = ntn // bn
    assert gx * bn == ntn and (ntm // bm) * gx == 8 and bm * bn * 8 == ntm * ntn
    k.e("s_and_b32 s21, s2, 7\ns_lshr_b32 s22, s2, 3")
    k.e(f"s_and_b32 s23, s21, {gx-1}\ns_lshr_b32 s24, s21, {gx.bit_length()-1}")
    k.e(f"s_and_b32 s25, s22, {bn-1}\ns_lshr_b32 s26, s22, {bn.bit_length()-1}")
    k.e(f"s_mul_i32 s23, s23, {bn}\ns_add_u32 s17, s23, s25")
    k.e(f"s_mul_i32 s24, s24, {bm}\ns_add_u32 s16, s24, s26")

def gemm(name, c):
    k = KB()
    nw, mt, K, S, U, D, L, R = c["nw"], c["mt"], c["K"], c["S"], c["U"], c["D"], c["L"], c["R"]
    regs = c["regions"]
    ntq = c["ntq"]
    nt = ntq * len(regs)
    NB = 2 * nt
    assert NB % nw == 0
    nb = NB // nw
    assert (2 * ntq) % nb == 0
    RS = 256 * ntq
    RB = 8 * RS
    STG = RB * len(regs)
    NT = K // 64
    assert NT % U == 0 and (2 * U) % D == 0 and (2 * nt * U) % R == 0 and R >= L + 1 and 2 * L <= 15
    nwg = c["ntm"] * c["ntn"]
    lds_bytes = max(S * STG, c.get("lds_min", 0))
    nacc = mt * nt * 4
    V = nacc
    vLane, vAoff, vRdL, vRdC, vRdN, vT0, vT1, vT2, vT3 = range(V, V + 9)
    vDma = V + 9
    V2 = vDma + nb
    V2 = (V2 + 3) // 4 * 4
    ringsz = D * mt * 4 + R * 4
    if c.get("ring_in_agpr", False):
        ringA, ringB = Reg("a", 0), Reg("a", D * mt * 4); na = ringsz; nv = V2
    else:
        ringA, ringB = Reg("v", V2), Reg("v", V2 + D * mt * 4); na = 0; nv = V2 + ringsz
    nv = max(nv, c.get("nv_min", 0))
    acc = lambda i, j: Reg("v", (i * nt + j) * 4)
    k.e(f"s_cmp_ge_u32 s2, {nwg}\ns_cbranch_scc1 L_{name}_end")
    k.e("s_load_dwordx16 s[64:79], s[0:1], 0\ns_load_dwordx4 s[80:83], s[0:1], 64")
    k.e(f"v_lshrrev_b32 v{vT0}, 6, v0\nv_and_b32 v{vLane}, 63, v0\ns_nop 0\nv_readfirstlane_b32 s20, v{vT0}")
    tile_map(k, c["ntm"], c["ntn"], c["xb"])
    for i in range(nacc): k.e(f"v_mov_b32 v{i}, 0") if i else None
    k.e("v_mov_b32 v0, 0")
    k.e(f"v_lshlrev_b32 v{vAoff}, 4, v{vLane}")
    k.e(f"v_lshrrev_b32 v{vT0}, 5, v{vLane}\nv_mul_u32_u24 v{vRdL}, {2*RS}, v{vT0}")
    k.e(f"v_and_b32 v{vT0}, 31, v{vLane}\nv_lshrrev_b32 v{vT1}, 2, v{vT0}\nv_lshl_add_u32 v{vRdL}, v{vT1}, 5, v{vRdL}")
    k.e(f"v_and_b32 v{vT0}, 3, v{vLane}\nv_lshl_add_u32 v{vRdL}, v{vT0}, 3, v{vRdL}")
    wpr = 2 * ntq // nb
    k.e(f"s_mul_i32 s27, s20, {nb}")
    if len(regs) > 1:
        assert len(regs) == 2
        k.e(f"s_cmp_ge_u32 s20, {wpr}\ns_cselect_b32 s28, {2*ntq}, 0\ns_sub_u32 s29, s27, s28")
    else:
        k.e("s_mov_b32 s29, s27")
    magic = (65536 + ntq - 1) // ntq
    for x in range(8 * ntq): assert (x * magic) >> 16 == x // ntq
    ldb = regs[0][1]
    k.e(f"s_mov_b32 s30, {magic}\ns_mov_b32 s31, {ldb}")
    for i in range(nb):
        d = vDma + i
        k.e(f"s_add_u32 s28, s29, {i}\ns_lshl_b32 s28, s28, 2")
        k.e(f"v_lshrrev_b32 v{vT0}, 4, v{vLane}\nv_add_u32 v{vT0}, s28, v{vT0}")
        k.e(f"v_mul_lo_u32 v{vT1}, v{vT0}, s30\nv_lshrrev_b32 v{vT1}, 16, v{vT1}")
        k.e(f"v_mul_u32_u24 v{vT2}, {ntq}, v{vT1}\nv_sub_u32 v{vT0}, v{vT0}, v{vT2}")
        if c.get("qkv", False):
            k.e(f"v_lshrrev_b32 v{vT2}, 2, v{vT0}\nv_lshlrev_b32 v{vT2}, 11, v{vT2}\nv_and_b32 v{vT0}, 3, v{vT0}\nv_lshl_add_u32 v{d}, v{vT0}, 5, v{vT2}")
        else:
            k.e(f"v_lshlrev_b32 v{d}, 5, v{vT0}")
        k.e(f"v_and_b32 v{vT0}, 1, v{vLane}\nv_lshl_add_u32 v{d}, v{vT0}, 4, v{d}")
        k.e(f"v_lshrrev_b32 v{vT0}, 2, v{vT1}\nv_lshlrev_b32 v{vT0}, 5, v{vT0}")
        k.e(f"v_bfe_u32 v{vT2}, v{vT1}, 1, 1")
        k.e(f"v_and_b32 v{vT1}, 1, v{vT1}")
        k.e(f"v_bfe_u32 v{vT3}, v{vLane}, 3, 1")
        if c["kperm"] == "std":
            k.e(f"v_lshl_add_u32 v{vT0}, v{vT2}, 4, v{vT0}\nv_lshl_add_u32 v{vT0}, v{vT3}, 3, v{vT0}\nv_lshl_add_u32 v{vT0}, v{vT1}, 2, v{vT0}")
        else:
            k.e(f"v_lshl_add_u32 v{vT0}, v{vT1}, 4, v{vT0}\nv_lshl_add_u32 v{vT0}, v{vT2}, 3, v{vT0}\nv_lshl_add_u32 v{vT0}, v{vT3}, 2, v{vT0}")
        k.e(f"v_bfe_u32 v{vT1}, v{vLane}, 1, 2\nv_add_u32 v{vT0}, v{vT0}, v{vT1}")
        k.e(f"v_mul_lo_u32 v{vT0}, v{vT0}, s31\nv_add_u32 v{d}, v{d}, v{vT0}")
    k.e("s_waitcnt lgkmcnt(0)")
    srd(k, 8, 82, (K // 32) * MT * 1024, c["a_off"])
    p0 = 64 + regs[0][0] // 4
    if len(regs) > 1:
        p1 = 64 + regs[1][0] // 4
        k.e(f"s_cmp_ge_u32 s20, {wpr}\ns_cselect_b32 s12, s{p1}, s{p0}\ns_cselect_b32 s13, s{p1+1}, s{p0+1}")
        k.e(f"s_mov_b32 s14, {regs[0][2]}\ns_mov_b32 s15, 0x20000")
    else:
        srd(k, 12, p0, regs[0][2])
    k.e(f"s_mul_i32 s32, s16, {nw*mt}\ns_mul_i32 s28, s20, {mt}\ns_add_u32 s18, s32, s28\ns_lshl_b32 s32, s18, 10")
    k.e(f"s_mul_i32 s33, s17, {c['bcol']}")
    k.e(f"s_lshl_b32 s39, s27, 10")
    k.e(f"s_mov_b32 s37, 0\ns_mov_b32 s35, 0\ns_mov_b32 s38, 0x7ff00000")
    if "pre" in c: c["pre"](k, locals())

    def a_loads(u, valid=True):
        ops = []
        for i in range(mt):
            dst = ringA.r(4, ((u % D) * mt + i) * 4)
            so = "s32" if valid else "s38"
            ops.append(("vm", f"buffer_load_dwordx4 {dst}, v{vAoff}, s[8:11], {so} offen offset:{i*1024}", ("A", u)))
        if valid: ops.append(("s", f"s_add_u32 s32, s32, {MT*1024}", None))
        return ops
    def dma_ops(t):
        ops = []
        for i in range(nb):
            ops.append(("vm", f"s_add_u32 m0, s36, {i*1024}\ns_nop 0\nbuffer_load_dwordx4 v{vDma+i}, s[12:15], s33 offen lds", ("B", t)))
        ops.append(("s", f"s_add_u32 s33, s33, {64*ldb}", None))
        return ops
    def emit_op(op):
        if op[0] == "vm": k.vmem(op[1], op[2])
        else: k.e(op[1])
    def rd_frag(F, addr):
        t, f = divmod(F, 2 * nt)
        s, j = divmod(f, nt)
        q, jj = divmod(j, ntq)
        slot = ringB.idx + (F % R) * 4
        for p in range(2):
            off = q * RB + (4 * s + p) * RS + 256 * jj
            k.lds(f"ds_read_b64_tr_b16 {ringB.kind}[{slot+2*p}:{slot+2*p+1}], v{addr} offset:{off}", ("F", F))
    order = c["order"]
    side = []
    def body(t, real):
        nonlocal side
        for f in range(2 * nt):
            s, j = divmod(f, nt)
            u = 2 * t + s
            F = t * 2 * nt + f
            if j == 0:
                side = side + a_loads(u - 1 + D, valid=(u - 1 + D >= 0))
            if f == 2 * nt - L:
                if t >= -1:
                    assert not any(o[2] == ("B", t + 1) for o in side)
                    k.wait_vm(("B", t + 1))
                    k.e("s_barrier")
                    k.e(f"v_add_u32 v{vRdN}, s35, v{vRdL}")
                    k.e(f"s_add_u32 s35, s35, {STG}\ns_cmp_eq_u32 s35, {S*STG}\ns_cselect_b32 s35, 0, s35")
                k.e(f"s_add_u32 s36, s37, s39\ns_add_u32 s37, s37, {STG}\ns_cmp_eq_u32 s37, {S*STG}\ns_cselect_b32 s37, 0, s37")
                side = side + dma_ops(t + S - 1)
            if F + L >= 0:
                rd_frag(F + L, vRdN if f + L >= 2 * nt else vRdC)
            if real:
                if j == 0:
                    assert not any(o[2] == ("A", u) for o in side)
                    k.wait_vm(("A", u))
                k.wait_lg(("F", F))
            slot = ringB.idx + (F % R) * 4
            wf = f"{ringB.kind}[{slot}:{slot+3}]"
            for i in range(mt):
                if real:
                    af = ringA.r(4, ((u % D) * mt + i) * 4)
                    a = acc(i, j).r()
                    if order(j) == "wA": k.e(f"v_mfma_f32_16x16x32_bf16 {a}, {wf}, {af}, {a}")
                    else: k.e(f"v_mfma_f32_16x16x32_bf16 {a}, {af}, {wf}, {a}")
                if side and (i % c.get("side_every", 1) == 0):
                    op = side.pop(0); emit_op(op)
                    while side and side[0][0] == "s": emit_op(side.pop(0))
        if t >= -1: k.e(f"v_mov_b32 v{vRdC}, v{vRdN}")
    t0 = -(S - 1)
    t0 = min(t0, -((D + 1) // 2))
    for t in range(t0, 0):
        assert t + S - 1 >= 0 or True
        if t + S - 1 < 0:
            raise Exception("D too deep relative to S")
        body(t, False)
    k.e(f"s_mov_b32 s34, {NT // U}")
    k.e(f"L_{name}_loop:")
    snap = ([(a, b) for a, b in k.vm], list(k.lg), list(side))
    for t in range(U): body(t, True)
    def shift(tag):
        a, b = tag
        return (a, b - {"A": 2 * U, "B": U, "F": 2 * nt * U}[a])
    sv = [shift(x) for x in k.vm]; sl = [shift(x) for x in k.lg]
    assert len(sv) == 0 or snap[0][-len(sv):] == sv, (k.vm, snap[0])
    assert len(sl) == 0 or snap[1][-len(sl):] == sl, (k.lg, snap[1])
    assert [x[1] for x in side] == [x[1] for x in snap[2]], (side, snap[2])
    k.e(f"s_sub_u32 s34, s34, 1\ns_cmp_lg_u32 s34, 0\ns_cbranch_scc1 L_{name}_loop")
    side = []
    k.wait_all()
    k.e("s_nop 7\ns_nop 7")
    c["epilogue"](k, locals())
    k.e(f"L_{name}_end:\ns_endpgm")
    return header(name) + k.text(), descriptor(name, nv, na), lds_bytes
```

```python
class KB:
    def __init__(self):
        self.L = []
        self.vm = []
        self.lg = []
    def e(self, s):
        for ln in s.split("\n"):
            ln = ln.strip()
            if ln: self.L.append("  " + ln if not ln.endswith(":") else ln)
    def vmem(self, s, tag=None):
        self.e(s); self.vm.append(tag)
    def lds(self, s, tag=None):
        self.e(s); self.lg.append(tag)
    def _wait(self, q, tag, name, mx):
        idx = max((i for i, t in enumerate(q) if t == tag), default=-1)
        if idx < 0: return q
        n = len(q) - 1 - idx
        assert n <= mx, (name, n)
        self.e(f"s_waitcnt {name}({n})")
        return q[idx + 1:]
    def wait_vm(self, tag): self.vm = self._wait(self.vm, tag, "vmcnt", 63)
    def wait_lg(self, tag): self.lg = self._wait(self.lg, tag, "lgkmcnt", 15)
    def wait_all(self):
        self.e("s_waitcnt vmcnt(0) lgkmcnt(0)"); self.vm = []; self.lg = []
    def wait_vm0(self):
        self.e("s_waitcnt vmcnt(0)"); self.vm = []
    def wait_lg0(self):
        self.e("s_waitcnt lgkmcnt(0)"); self.lg = []
    def text(self): return "\n".join(self.L) + "\n"

def srd(k, d, lo, nbytes, off=0):
    if off:
        k.e(f"s_add_u32 s{d}, s{lo}, {off}\ns_addc_u32 s{d+1}, s{lo+1}, 0")
    else:
        k.e(f"s_mov_b32 s{d}, s{lo}\ns_mov_b32 s{d+1}, s{lo+1}")
    k.e(f"s_mov_b32 s{d+2}, {nbytes}\ns_mov_b32 s{d+3}, 0x20000")

def header(name):
    return f".globl {name}\n.p2align 8\n.type {name},@function\n{name}:\n"

def descriptor(name, nv, na, ns=96):
    acc = (nv + 3) // 4 * 4
    nfv = acc + na if na else nv
    return (f".amdhsa_kernel {name}\n  .amdhsa_next_free_vgpr {nfv}\n  .amdhsa_next_free_sgpr {ns}\n"
            f"  .amdhsa_accum_offset {acc}\n  .amdhsa_group_segment_fixed_size 0\n  .amdhsa_kernarg_size 80\n"
            f"  .amdhsa_user_sgpr_count 2\n  .amdhsa_user_sgpr_kernarg_segment_ptr 1\n"
            f"  .amdhsa_system_sgpr_workgroup_id_x 1\n.end_amdhsa_kernel\n")
```

```python
import sys
from kb import *
from gemm import *

MB = 1 << 20
WS_XN, WS_PQ, WS_KVP, WS_O, WS_H, WS_HN, WS_ACT = 0, 4*MB, 8*MB, 12*MB, 16*MB, 20*MB, 24*MB
LOG2E = "0x3fb8aa3b"
def f2h(x):
    import struct
    return "0x%08x" % struct.unpack("<I", struct.pack("<f", x))[0]

def sum_g(k, x, t):
    k.e(f"v_mov_b32 v{t}, v{x}\ns_nop 1\nv_permlane32_swap_b32 v{x}, v{t}\nv_add_f32 v{x}, v{x}, v{t}")
    k.e(f"v_mov_b32 v{t}, v{x}\ns_nop 1\nv_permlane16_swap_b32 v{x}, v{t}\nv_add_f32 v{x}, v{x}, v{t}")

def prefetch_code(k, name, specs, nwg0, nwgp, nwaves):
    nthr = nwgp * nwaves * 64
    stride = nthr * 64
    k.e(f"L_{name}_pf:")
    k.e(f"s_sub_u32 s3, s2, {nwg0}\ns_mul_i32 s3, s3, {nwaves*64}\nv_add_u32 v1, s3, v0\nv_lshlrev_b32 v1, 6, v1")
    k.e("s_waitcnt lgkmcnt(0)")
    r = 2
    for (sp, nbytes) in specs:
        srd(k, 8, sp, nbytes)
        k.e("s_mov_b32 s4, 0")
        for it in range((nbytes + stride - 1) // stride):
            k.e(f"buffer_load_dword v{r}, v1, s[8:11], s4 offen")
            k.e(f"s_add_u32 s4, s4, {stride}")
            r = 2 + (r - 1) % 8
    k.e("s_waitcnt vmcnt(0)")
    k.e(f"s_branch L_{name}_end")

def ln_kernel(name, first, pf=None):
    k = KB()
    npf = pf[1] if pf else 0
    k.e(f"s_cmp_ge_u32 s2, {128+npf}\ns_cbranch_scc1 L_{name}_end")
    k.e("s_load_dwordx16 s[64:79], s[0:1], 0\ns_load_dwordx4 s[80:83], s[0:1], 64")
    if pf:
        k.e(f"s_cmp_ge_u32 s2, 128\ns_cbranch_scc1 L_{name}_pf")
    k.e("v_lshrrev_b32 v1, 6, v0\nv_and_b32 v2, 63, v0\ns_nop 0\nv_readfirstlane_b32 s20, v1")
    k.e("v_and_b32 v3, 15, v2\nv_lshrrev_b32 v4, 4, v2\nv_lshlrev_b32 v5, 4, v2")
    k.e("s_waitcnt lgkmcnt(0)")
    k.e("s_lshl_b32 s21, s20, 9\ns_add_u32 s21, s21, s2\ns_lshl_b32 s21, s21, 10")
    if first:
        srd(k, 8, 64, 4*MB)
        k.e("v_lshlrev_b32 v6, 11, v3\nv_lshl_add_u32 v6, v4, 4, v6")
        k.e("s_lshl_b32 s22, s2, 15\ns_lshl_b32 s23, s20, 8\ns_add_u32 s22, s22, s23")
        for i in range(4):
            k.e(f"buffer_load_dwordx4 v[{8+4*i}:{11+4*i}], v6, s[8:11], s22 offen offset:{64*i}")
        srd(k, 12, 82, 4*MB, WS_XN)
    else:
        srd(k, 8, 82, 4*MB, WS_H)
        k.e("s_mov_b32 s22, s21")
        for i in range(4):
            k.e(f"buffer_load_dwordx4 v[{8+4*i}:{11+4*i}], v5, s[8:11], s22 offen\ns_add_u32 s22, s22, {128*1024}")
        srd(k, 12, 82, 4*MB, WS_HN)
    k.e("v_lshlrev_b32 v7, 5, v3\ns_lshl_b32 s23, s20, 2\nv_add_u32 v60, s23, v7")
    k.e("s_waitcnt vmcnt(0)")
    for i in range(16):
        k.e(f"v_lshlrev_b32 v{24+2*i}, 16, v{8+i}\nv_and_b32 v{25+2*i}, 0xffff0000, v{8+i}")
    k.e("v_add_f32 v56, v24, v25")
    for i in range(2, 32): k.e(f"v_add_f32 v56, v56, v{24+i}")
    sum_g(k, 56, 57)
    k.e("ds_write_b32 v60, v56\ns_waitcnt lgkmcnt(0)\ns_barrier")
    k.e("ds_read_b128 v[8:11], v7\nds_read_b128 v[12:15], v7 offset:16\ns_waitcnt lgkmcnt(0)")
    k.e("v_add_f32 v56, v8, v9")
    for i in range(10, 16): k.e(f"v_add_f32 v56, v56, v{i}")
    k.e(f"v_mul_f32 v56, {f2h(1/1024)}, v56")
    for i in range(32): k.e(f"v_sub_f32 v{24+i}, v{24+i}, v56")
    k.e("v_mul_f32 v58, v24, v24")
    for i in range(1, 32): k.e(f"v_fmac_f32 v58, v{24+i}, v{24+i}")
    sum_g(k, 58, 57)
    k.e("ds_write_b32 v60, v58 offset:512\ns_waitcnt lgkmcnt(0)\ns_barrier")
    k.e("ds_read_b128 v[8:11], v7 offset:512\nds_read_b128 v[12:15], v7 offset:528\ns_waitcnt lgkmcnt(0)")
    k.e("v_add_f32 v58, v8, v9")
    for i in range(10, 16): k.e(f"v_add_f32 v58, v58, v{i}")
    k.e(f"v_mov_b32 v59, {f2h(1e-5)}\nv_fmac_f32 v59, {f2h(1/1024)}, v58\nv_rsq_f32 v59, v59\ns_nop 0")
    for i in range(32): k.e(f"v_mul_f32 v{24+i}, v{24+i}, v59")
    for i in range(16): k.e(f"v_cvt_pk_bf16_f32 v{8+i}, v{24+2*i}, v{25+2*i}")
    for i in range(4):
        k.e(f"buffer_store_dwordx4 v[{8+4*i}:{11+4*i}], v5, s[12:15], s21 offen\ns_add_u32 s21, s21, {128*1024}")
    if pf:
        k.e(f"s_branch L_{name}_end")
        prefetch_code(k, name, pf[0], 128, npf, 8)
    k.e(f"L_{name}_end:\ns_endpgm")
    return header(name) + k.text(), descriptor(name, 64, 0), 1024

def attn_kernel(name):
    k = KB()
    k.e(f"s_cmp_ge_u32 s2, 256\ns_cbranch_scc1 L_{name}_end")
    k.e("s_load_dwordx2 s[82:83], s[0:1], 72")
    k.e("v_lshrrev_b32 v1, 6, v0\nv_and_b32 v2, 63, v0\ns_nop 0\nv_readfirstlane_b32 s20, v1")
    k.e("v_lshlrev_b32 v5, 4, v2")
    k.e("s_and_b32 s16, s2, 31\ns_lshr_b32 s17, s2, 5")
    k.e("s_waitcnt lgkmcnt(0)")
    srd(k, 8, 82, 3*MB, WS_KVP)
    srd(k, 12, 82, 4*MB, WS_PQ)
    srd(k, 24, 82, 4*MB, WS_O)
    k.e("s_lshl_b32 s21, s16, 4\ns_lshl_b32 s22, s20, 2\ns_add_u32 s21, s21, s22\ns_mul_i32 s21, s21, 6144")
    for pi in range(4):
        for q in range(6):
            r = 8 + (pi * 6 + q) * 4
            k.e(f"s_add_u32 s23, s21, {pi*6144 + (q//3)*3072}") if q % 3 == 0 else None
            k.e(f"buffer_load_dwordx4 v[{r}:{r+3}], v5, s[8:11], s23 offen offset:{(q%3)*1024}")
    k.e("s_lshl_b32 s21, s16, 7\ns_lshl_b32 s22, s17, 4\ns_add_u32 s21, s21, s22\ns_lshl_b32 s22, s20, 2\ns_add_u32 s21, s21, s22\ns_lshl_b32 s21, s21, 10")
    for i in range(4):
        k.e(f"buffer_load_dwordx4 v[{104+4*i}:{107+4*i}], v5, s[12:15], s21 offen offset:{1024*i}")
    k.e("s_waitcnt vmcnt(4)")
    for pi in range(1, 4):
        for x in range(24): k.e(f"v_add_f32 v{8+x}, v{8+x}, v{8+pi*24+x}")
    k.e("s_mul_i32 s22, s20, 6144\nv_add_u32 v6, s22, v5")
    for q in range(6): k.e(f"ds_write_b128 v6, v[{8+4*q}:{11+4*q}] offset:{1024*q}")
    k.e("s_waitcnt lgkmcnt(0)\ns_barrier")
    for w in range(4):
        for q in range(6):
            r = 8 + (w * 6 + q) * 4
            k.e(f"ds_read_b128 v[{r}:{r+3}], v5 offset:{w*6144 + q*1024}")
    k.e("s_waitcnt lgkmcnt(0)")
    for pi in range(1, 4):
        for x in range(24): k.e(f"v_add_f32 v{8+x}, v{8+x}, v{8+pi*24+x}")
    for x in range(12): k.e(f"v_cvt_pk_bf16_f32 v{32+x}, v{8+2*x}, v{9+2*x}")
    k.e("s_waitcnt vmcnt(0)\ns_nop 1")
    for i in range(4):
        pq = f"v[{104+4*i}:{107+4*i}]"
        for o in range(3):
            d = 48 + (i * 3 + o) * 4
            k.e(f"v_mfma_f32_16x16x32_bf16 v[{d}:{d+3}], v[{32+4*o}:{35+4*o}], {pq}, 0")
    k.e("s_nop 7\ns_nop 7")
    for i in range(4):
        d = 48 + i * 12
        k.e(f"v_add_f32 v{d+8}, {f2h(1e-6)}, v{d+8}\nv_rcp_f32 v{d+8}, v{d+8}\ns_nop 0")
        for x in range(8): k.e(f"v_mul_f32 v{d+x}, v{d+x}, v{d+8}")
        for x in range(4): k.e(f"v_cvt_pk_bf16_f32 v{8+4*i+x}, v{d+2*x}, v{d+2*x+1}")
        k.e(f"buffer_store_dwordx4 v[{8+4*i}:{11+4*i}], v5, s[24:27], s21 offen offset:{1024*i}")
    k.e(f"L_{name}_end:\ns_endpgm")
    return header(name) + k.text(), descriptor(name, 120, 0), 4 * 6144

def phi(k, r, t):
    k.e(f"v_mul_f32 v{t}, {LOG2E}, v{r}\nv_min_f32 v{t}, 0, v{t}\nv_exp_f32 v{t}, v{t}\nv_max_f32 v{r}, 0, v{r}\nv_add_f32 v{r}, {f2h(1e-6)}, v{r}\nv_add_f32 v{r}, v{r}, v{t}")

def epi_qkv(k, L):
    acc, mt, vAoff, nt = L["acc"], L["mt"], L["vAoff"], L["nt"]
    T = L["ringA"].idx
    assert L["ringA"].kind == "v" and mt == 2
    srd(k, 8, 82, 4*MB, WS_PQ)
    srd(k, 12, 82, 3*MB, WS_KVP)
    k.e("s_barrier")
    for i in range(mt):
        for j in range(8):
            for r in range(4): phi(k, acc(i, j).idx + r, T + r)
    k.e("s_lshl_b32 s21, s17, 8\ns_add_u32 s21, s21, s18\ns_lshl_b32 s21, s21, 10")
    for hh in range(2):
        for i in range(mt):
            d = T + (hh * 2 + i) * 4
            for x in range(2):
                a = acc(i, 2 * hh + x).idx
                k.e(f"v_cvt_pk_bf16_f32 v{d+2*x}, v{a}, v{a+1}\nv_cvt_pk_bf16_f32 v{d+2*x+1}, v{a+2}, v{a+3}")
            k.e(f"buffer_store_dwordx4 v[{d}:{d+3}], v{vAoff}, s[8:11], s21 offen offset:{i*1024}")
        k.e(f"s_add_u32 s21, s21, {128*1024}")
    P = T + 16
    for j in range(4, 12):
        for i in range(mt):
            a = acc(i, j).idx
            d = P + (j - 4) * 4 + 2 * i
            k.e(f"v_cvt_pk_bf16_f32 v{d}, v{a}, v{a+1}\nv_cvt_pk_bf16_f32 v{d+1}, v{a+2}, v{a+3}")
    ones = P + 32
    for x in range(4): k.e(f"v_mov_b32 v{ones+x}, 0x3f803f80")
    k.e("s_nop 1")
    for hh in range(2):
        for o in range(3):
            for dt in range(2):
                d = ((hh * 3 + o) * 2 + dt) * 4
                pk = P + (hh * 2 + dt) * 4
                b = (P + 16 + (hh * 2 + o) * 4) if o < 2 else ones
                k.e(f"v_mfma_f32_16x16x32_bf16 v[{d}:{d+3}], v[{pk}:{pk+3}], v[{b}:{b+3}], 0")
    k.e("s_nop 7\ns_nop 7")
    k.e(f"s_mul_i32 s22, s20, 12288\nv_add_u32 v{T+60}, s22, v{vAoff}")
    for q in range(12): k.e(f"ds_write_b128 v{T+60}, v[{4*q}:{4*q+3}] offset:{1024*q}")
    k.e("s_waitcnt lgkmcnt(0)\ns_barrier")
    k.e(f"s_mul_i32 s22, s20, 3072\nv_add_u32 v{T+60}, s22, v{vAoff}")
    for w in range(4):
        for q in range(3):
            r = (w * 3 + q) * 4
            k.e(f"ds_read_b128 v[{r}:{r+3}], v{T+60} offset:{w*12288 + q*1024}")
    k.e("s_waitcnt lgkmcnt(0)")
    for w in range(1, 4):
        for x in range(12): k.e(f"v_add_f32 v{x}, v{x}, v{w*12+x}")
    k.e("s_lshr_b32 s21, s20, 1\ns_lshl_b32 s22, s17, 1\ns_add_u32 s21, s21, s22\ns_lshl_b32 s21, s21, 4\ns_add_u32 s21, s21, s16\ns_mul_i32 s21, s21, 6144")
    k.e("s_and_b32 s22, s20, 1\ns_mul_i32 s22, s22, 3072\ns_add_u32 s21, s21, s22")
    for q in range(3): k.e(f"buffer_store_dwordx4 v[{4*q}:{4*q+3}], v{vAoff}, s[12:15], s21 offen offset:{1024*q}")

def epi_wo(k, L):
    acc, mt, vAoff, nt, vLane = L["acc"], L["mt"], L["vAoff"], L["nt"], L["vLane"]
    T = L["ringA"].idx
    srd(k, 8, 64, 4*MB)
    srd(k, 12, 82, 4*MB, WS_H)
    k.e(f"v_and_b32 v{T}, 15, v{vLane}\nv_lshlrev_b32 v{T}, 11, v{T}\nv_lshrrev_b32 v{T+1}, 4, v{vLane}\nv_lshl_add_u32 v{T}, v{T+1}, 3, v{T}")
    k.e(f"s_lshl_b32 s21, s18, 15\ns_mul_i32 s22, s17, {nt*32}\ns_add_u32 s21, s21, s22")
    X = T + 4
    for i in range(mt):
        for j in range(nt):
            d = X + (i * nt + j) * 2
            k.e(f"buffer_load_dwordx2 v[{d}:{d+1}], v{T}, s[8:11], s21 offen offset:{32*j}")
        k.e("s_add_u32 s21, s21, 32768")
    k.e(f"s_mul_i32 s21, s17, {nt//2*128}\ns_add_u32 s21, s21, s18\ns_lshl_b32 s21, s21, 10")
    k.e("s_waitcnt vmcnt(0)")
    for jp in range(nt // 2):
        for i in range(mt):
            for x in range(2):
                j = 2 * jp + x
                a = acc(i, j).idx; d = X + (i * nt + j) * 2
                for h in range(2):
                    k.e(f"v_lshlrev_b32 v{T+1}, 16, v{d+h}\nv_and_b32 v{T+2}, 0xffff0000, v{d+h}\nv_add_f32 v{a+2*h}, v{a+2*h}, v{T+1}\nv_add_f32 v{a+2*h+1}, v{a+2*h+1}, v{T+2}")
            a0, a1 = acc(i, 2 * jp).idx, acc(i, 2 * jp + 1).idx
            k.e(f"v_cvt_pk_bf16_f32 v{a0}, v{a0}, v{a0+1}\nv_cvt_pk_bf16_f32 v{a0+1}, v{a0+2}, v{a0+3}\nv_cvt_pk_bf16_f32 v{a0+2}, v{a1}, v{a1+1}\nv_cvt_pk_bf16_f32 v{a0+3}, v{a1+2}, v{a1+3}")
            k.e(f"buffer_store_dwordx4 v[{a0}:{a0+3}], v{vAoff}, s[12:15], s21 offen offset:{i*1024}")
        k.e(f"s_add_u32 s21, s21, {128*1024}")

def epi_geglu(k, L):
    acc, mt, vAoff, nt, ntq = L["acc"], L["mt"], L["vAoff"], L["nt"], L["ntq"]
    T0, T1 = L["vT0"], L["vT1"]
    import math
    c1 = -2 * math.sqrt(2 / math.pi) * math.log2(math.e)
    c2 = c1 * 0.044715
    srd(k, 12, 82, 112 * 128 * 1024, WS_ACT)
    k.e(f"s_mov_b32 s24, {f2h(c1)}\ns_mov_b32 s25, {f2h(c2)}")
    k.e(f"v_mov_b32 v{T1}, s24")
    for j in range(ntq):
        k.e(f"s_mul_i32 s21, s17, {ntq}\ns_add_u32 s21, s21, {j}\ns_and_b32 s22, s21, 1\ns_lshr_b32 s21, s21, 1\ns_lshl_b32 s21, s21, 7\ns_add_u32 s21, s21, s18\ns_lshl_b32 s21, s21, 10\ns_lshl_b32 s22, s22, 3\ns_add_u32 s21, s21, s22")
        for i in range(mt):
            g = acc(i, j).idx; u = acc(i, ntq + j).idx
            for r in range(4):
                k.e(f"v_mul_f32 v{T0}, v{g+r}, v{g+r}\nv_fma_f32 v{T0}, v{T0}, s25, v{T1}\nv_mul_f32 v{T0}, v{T0}, v{g+r}\nv_exp_f32 v{T0}, v{T0}\nv_mul_f32 v{u+r}, v{u+r}, v{g+r}\nv_add_f32 v{T0}, 1.0, v{T0}\nv_rcp_f32 v{T0}, v{T0}\ns_nop 0\nv_mul_f32 v{g+r}, v{u+r}, v{T0}")
            k.e(f"v_cvt_pk_bf16_f32 v{g}, v{g}, v{g+1}\nv_cvt_pk_bf16_f32 v{g+1}, v{g+2}, v{g+3}")
            k.e(f"buffer_store_dwordx2 v[{g}:{g+1}], v{vAoff}, s[12:15], s21 offen offset:{i*1024}")

def epi_out(k, L):
    acc, mt, vAoff, nt, vLane = L["acc"], L["mt"], L["vAoff"], L["nt"], L["vLane"]
    T = L["ringA"].idx
    srd(k, 8, 82, 4*MB, WS_H)
    srd(k, 12, 78, 4*MB)
    X = T + 4
    k.e(f"s_mul_i32 s21, s17, {nt//2*128}\ns_add_u32 s21, s21, s18\ns_lshl_b32 s21, s21, 10")
    for jp in range(nt // 2):
        for i in range(mt):
            d = X + (jp * mt + i) * 4
            k.e(f"buffer_load_dwordx4 v[{d}:{d+3}], v{vAoff}, s[8:11], s21 offen offset:{i*1024}")
        k.e(f"s_add_u32 s21, s21, {128*1024}")
    k.e(f"v_and_b32 v{T}, 15, v{vLane}\nv_lshlrev_b32 v{T}, 11, v{T}\nv_bfe_u32 v{T+1}, v{vLane}, 4, 1\nv_lshl_add_u32 v{T}, v{T+1}, 5, v{T}\nv_bfe_u32 v{T+1}, v{vLane}, 5, 1\nv_lshl_add_u32 v{T}, v{T+1}, 4, v{T}")
    k.e(f"s_lshl_b32 s21, s18, 15\ns_mul_i32 s22, s17, {nt*32}\ns_add_u32 s21, s21, s22")
    k.e("s_waitcnt vmcnt(0)")
    for i in range(mt):
        for jp in range(nt // 2):
            d = X + (jp * mt + i) * 4
            for x in range(2):
                a = acc(i, 2 * jp + x).idx
                for h in range(2):
                    k.e(f"v_lshlrev_b32 v{T+1}, 16, v{d+2*x+h}\nv_and_b32 v{T+2}, 0xffff0000, v{d+2*x+h}\nv_add_f32 v{a+2*h}, v{a+2*h}, v{T+1}\nv_add_f32 v{a+2*h+1}, v{a+2*h+1}, v{T+2}")
            a0, a1 = acc(i, 2 * jp).idx, acc(i, 2 * jp + 1).idx
            k.e(f"v_cvt_pk_bf16_f32 v{a0}, v{a0}, v{a0+1}\nv_cvt_pk_bf16_f32 v{a0+1}, v{a0+2}, v{a0+3}\nv_cvt_pk_bf16_f32 v{a0+2}, v{a1}, v{a1+1}\nv_cvt_pk_bf16_f32 v{a0+3}, v{a1+2}, v{a1+3}")
            k.e(f"s_nop 1\nv_permlane16_swap_b32 v{a0}, v{a0+2}\nv_permlane16_swap_b32 v{a0+1}, v{a0+3}")
            k.e(f"buffer_store_dwordx4 v[{a0}:{a0+3}], v{T}, s[12:15], s21 offen offset:{64*jp}")
        k.e("s_add_u32 s21, s21, 32768")

def build(opts=None):
    o = dict(pf=True)
    if opts: o.update(opts)
    ks = []
    pf0 = ([(66, 6*MB), (68, 2*MB)], 128) if o["pf"] else None
    pf4 = None
    ks.append(("ln1_kernel", ln_kernel("ln1_kernel", True, pf0), 128 + (128 if pf0 else 0), 512))
    ks.append(("gemm1_kernel", gemm("gemm1_kernel", dict(nw=4, mt=2, K=1024, S=5, U=2, D=4, L=6, R=8, regions=[(8, 6144, 6*MB)], ntq=12, qkv=True,
        kperm="std", a_off=WS_XN, bcol=128, ntm=16, ntn=16, xb=(4, 8), order=lambda j: "wA" if j < 4 else "wB", epilogue=epi_qkv, nv_min=96+12+4+64)), 256, 256))
    ks.append(("attn_kernel", attn_kernel("attn_kernel"), 256, 256))
    ks.append(("gemm2_kernel", gemm("gemm2_kernel", dict(nw=4, mt=2, K=1024, S=6, U=4, D=8, L=6, R=8, regions=[(16, 2048, 2*MB)], ntq=4,
        kperm="perm", a_off=WS_O, bcol=128, ntm=16, ntn=16, xb=(4, 8), order=lambda j: "wA", epilogue=epi_wo)), 256, 256))
    ks.append(("ln2_kernel", ln_kernel("ln2_kernel", False, pf4), 128, 512))
    ks.append(("gemm3_kernel", gemm("gemm3_kernel", dict(nw=4, mt=4, K=1024, S=4, U=2, D=4, L=4, R=7, regions=[(32, 7168, 7*MB), (40, 7168, 7*MB)], ntq=7,
        kperm="perm", a_off=WS_HN, bcol=224, ntm=8, ntn=32, xb=(4, 8), order=lambda j: "wA", epilogue=epi_geglu, ring_in_agpr=True, side_every=2)), 256, 256))
    ks.append(("gemm4_kernel", gemm("gemm4_kernel", dict(nw=4, mt=2, K=3584, S=6, U=4, D=8, L=6, R=8, regions=[(48, 2048, 7*MB)], ntq=4,
        kperm="perm", a_off=WS_ACT, bcol=128, ntm=16, ntn=16, xb=(4, 8), order=lambda j: "wA", epilogue=epi_out)), 256, 256))
    s = ""
    for nm, (t, d, lds), g, b in ks:
        s += f"; @launch kernel={nm} grid=({g},1,1) block=({b},1,1) lds={lds}\n"
    s += '.amdgcn_target "amdgcn-amd-amdhsa--gfx950"\n.text\n'
    for nm, (t, d, lds), g, b in ks: s += t
    s += '.section .rodata,"a"\n.p2align 6\n'
    for nm, (t, d, lds), g, b in ks: s += d
    return s

if __name__ == "__main__":
    out = sys.argv[1] if len(sys.argv) > 1 else "k.s"
    open(out, "w").write(build())
```
